```python
import torch

def _softmax(x, axis=-1):
    return torch.softmax(x, dim=axis)
def _gelu(x):
    return torch.nn.functional.gelu(x, approximate="tanh")
def _silu(x):
    return torch.nn.functional.silu(x)
def _sigmoid(x):
    return torch.sigmoid(x)
def _layernorm(x, axis=-1, eps=1e-5):
    m = x.mean(dim=axis, keepdim=True)
    v = x.var(dim=axis, keepdim=True, unbiased=False)
    return (x - m) / torch.sqrt(v + eps)
def _scatter_add(tgt, idx, src, axis=0):
    return tgt.clone().index_add_(axis, idx, src)
def _segment_sum(src, seg, n):
    out = torch.zeros((n,) + src.shape[1:], dtype=src.dtype)
    return out.index_add_(0, seg, src)
def _pad(x, pw):
    flat = tuple(v for pair in reversed(pw) for v in pair)
    return torch.nn.functional.pad(x, flat)

kernel_name = 'interleave_layers__spectral_gfnet__dense_activation_silu__prompt'

def setup_inputs():

    _w = (lambda a: (lambda t: t.to(torch.bfloat16) if t.is_floating_point() else t)(torch.as_tensor(a)))
    def _A_setup():
        B, S, D = 1, 2048, 1024
        Df = D // 2 + 1
        return {
            "x": _w((lambda *s: torch.randn(*s, dtype=torch.bfloat16) * 0.05)(B, S, D)),
            "w_r": _w((lambda *s: torch.randn(*s, dtype=torch.bfloat16) * 0.4)(S, Df) * 0.02),
            "w_i": _w((lambda *s: torch.randn(*s, dtype=torch.bfloat16) * 0.4)(S, Df) * 0.02),
        }
    _A_in = _A_setup()

    def _B_setup():
        B, S, D, F = 1, 2048, 1024, 3584
        return {
            "x": _w((lambda *s: torch.randn(*s, dtype=torch.bfloat16) * 0.05)(B, S, D)),
            "w1": _w((lambda *s: torch.randn(*s, dtype=torch.bfloat16) * 0.4)(D, F) * (D ** -0.5)),
            "w2": _w((lambda *s: torch.randn(*s, dtype=torch.bfloat16) * 0.1)(F, D) * (F ** -0.5)),
        }
    _B_in = _B_setup()

    return {
        "A_x": _A_in["x"],
        "A_w_r": _A_in["w_r"],
        "A_w_i": _A_in["w_i"],
        "B_x": _B_in["x"],
        "B_w1": _B_in["w1"],
        "B_w2": _B_in["w2"],
    }

def reference(A_x, A_w_r, A_w_i, B_x, B_w1, B_w2):
    def _A_ref(x, w_r, w_i):
        B, S, D = x.shape
        X = (lambda x, axes=(-2,-1): torch.fft.rfft2(x.float(), dim=axes))(x, axes=(-2, -1))
        W = w_r + 1j * w_i
        X = X * W
        y = (lambda x, s, axes=(-2,-1): torch.fft.irfft2(x, s=s, dim=axes).to(torch.bfloat16))(X, (S, D), axes=(-2, -1))
        return y

    def _B_ref(x, w1, w2):
        h = torch.einsum("bsd,df->bsf", x, w1)
        h = _silu(h)
        out = torch.einsum("bsf,fd->bsd", h, w2)
        return out

    x = A_x
    x = x + _A_ref(_layernorm(x, axis=-1), A_w_r, A_w_i)
    x = x + _B_ref(_layernorm(x, axis=-1), B_w1, B_w2)
    x = x + _A_ref(_layernorm(x, axis=-1), A_w_r, A_w_i)
    x = x + _B_ref(_layernorm(x, axis=-1), B_w1, B_w2)
    return x
```

```python
class K:
    def __init__(self, name):
        self.name = name; self.L = []; self.lbl = 0
    def __call__(self, s):
        for line in s.strip("\n").split("\n"):
            self.L.append("    " + line.strip())
    def label(self, n): self.L.append(f"{n}:")
    def newlabel(self, p="L"):
        self.lbl += 1; return f"{p}_{self.name}_{self.lbl}"
    def srd(self, d, lo, hi, nbytes):
        self(f"s_mov_b32 s{d}, s{lo}\ns_mov_b32 s{d+1}, s{hi}\ns_mov_b32 s{d+2}, {nbytes}\ns_mov_b32 s{d+3}, 0x00020000")
    def stamp_begin(self):
        self("s_memrealtime s[90:91]\ns_memtime s[92:93]\ns_load_dwordx4 s[84:87], s[0:1], 56")
    def mark(self, i):
        self(f"s_memtime s[{70+2*i}:{71+2*i}]")
    def stamp_end(self, wsbytes=268435456):
        self('''s_waitcnt vmcnt(0) lgkmcnt(0)
        s_memrealtime s[94:95]
        s_memtime s[88:89]
        s_lshr_b32 s84, s84, 9
        s_and_b32 s84, s84, 31
        s_lshl_b32 s84, s84, 16
        s_lshl_b32 s85, s2, 5
        s_add_u32 s84, s84, s85
        s_add_u32 s84, s84, 0x8000000
        s_mov_b32 s80, s86
        s_mov_b32 s81, s87
        s_mov_b32 s82, 0x10000000
        s_mov_b32 s83, 0x00020000
        s_waitcnt lgkmcnt(0)
        v_mov_b32 v2, s90
        v_mov_b32 v3, s94
        v_mov_b32 v4, s92
        v_mov_b32 v5, s88
        v_mov_b32 v1, 0
        v_cmp_eq_u32 vcc, 0, v0
        s_and_saveexec_b64 s[78:79], vcc
        s_cbranch_execz STAMP_SKIP_%s
        buffer_store_dwordx4 v[2:5], v1, s[80:83], s84 offen
        s_nop 1
        v_mov_b32 v2, s70
        v_mov_b32 v3, s72
        v_mov_b32 v4, s74
        v_mov_b32 v5, s76
        buffer_store_dwordx4 v[2:5], v1, s[80:83], s84 offen offset:16''' % self.name)
        self.label("STAMP_SKIP_" + self.name)
        self("s_mov_b64 exec, s[78:79]")
    def text(self):
        return (f".globl {self.name}\n.p2align 8\n.type {self.name},@function\n{self.name}:\n" + "\n".join(self.L) + "\n")
    def desc(self, vgpr, agpr=0, sgpr=96):
        acc = (vgpr + 3) // 4 * 4
        nfv = acc + agpr if agpr else vgpr
        return (f".p2align 6\n.amdhsa_kernel {self.name}\n  .amdhsa_next_free_vgpr {nfv}\n  .amdhsa_next_free_sgpr {sgpr}\n"
                f"  .amdhsa_accum_offset {acc}\n  .amdhsa_group_segment_fixed_size 0\n  .amdhsa_kernarg_size 72\n"
                f"  .amdhsa_user_sgpr_count 2\n  .amdhsa_user_sgpr_kernarg_segment_ptr 1\n"
                f"  .amdhsa_system_sgpr_workgroup_id_x 1\n.end_amdhsa_kernel\n")

def vr(b, n=1, p="v"):
    return f"{p}{b}" if n == 1 else f"{p}[{b}:{b+n-1}]"
def ar(b, n=1): return vr(b, n, "a")
def sr(b, n=1): return vr(b, n, "s")

def make_file(header, launches, kernels):
    out = [header.rstrip("\n")]
    for n, g, b, l in launches:
        out.append(f"; @launch kernel={n} grid=({g},1,1) block=({b},1,1) lds={l}")
    out.append('.amdgcn_target "amdgcn-amd-amdhsa--gfx950"\n.text')
    for k, v, a, s in kernels: out.append(k.text())
    out.append('.section .rodata,"a"')
    for k, v, a, s in kernels: out.append(k.desc(v, a, s))
    return "\n".join(out)
```

```python
from asmgen import *
from layout import *
import math

class Q:
    def __init__(self, k, cname, maxc):
        self.k = k; self.q = []; self.c = cname; self.done = -1; self.maxc = maxc
    def push(self, tag): self.q.append(tag)
    def need(self, tags):
        idx = max([self.q.index(t) for t in tags if t in self.q], default=-1)
        if idx <= self.done: return None
        self.done = idx
        return min(len(self.q) - 1 - idx, self.maxc)
    def wait(self, tags):
        n = self.need(tags)
        if n is not None: self.k(f"s_waitcnt {self.c}({n})")
    def outstanding(self): return len(self.q) - 1 - self.done

def gen_gemm(name, kind, stamps=False, P1=5, L=24, NB=32, LA=6, st_flags="nt", vgap=2, fill=8, SG=4, nostore=False, pro=8, novm=False, stgap=0):
    k = K(name)
    g1 = kind == "g1"
    NT = 7 if g1 else 8
    NG = 16 if g1 else 14
    NS = 2 * NG
    k(f"s_cmp_ge_u32 s2, 256\ns_cbranch_scc1 END_{name}")
    if stamps: k.stamp_begin()
    k("s_load_dwordx2 s[4:5], s[0:1], 64")
    k("""s_and_b32 s6, s2, 7
    s_lshr_b32 s7, s2, 3
    s_lshr_b32 s8, s6, 1
    s_and_b32 s9, s6, 1
    s_lshl_b32 s9, s9, 3
    s_lshr_b32 s10, s7, 2
    s_add_u32 s9, s9, s10
    s_and_b32 s10, s7, 3
    v_lshrrev_b32 v1, 6, v0
    v_and_b32 v5, 63, v0
    v_readfirstlane_b32 s11, v1
    v_lshlrev_b32 v4, 4, v5""")
    k("""v_lshrrev_b32 v7, 4, v5
    v_lshlrev_b32 v1, 9, v7
    v_and_b32 v6, 15, v5
    v_lshl_add_u32 v1, v6, 4, v1""")
    k("s_lshl_b32 s19, s9, 2\ns_add_u32 s19, s19, s11")
    RD = [8, 9, 10, 11, 12, 13]
    nseg = (NB * 4096 + 65535) // 65536
    k(f"""s_lshl_b32 s16, s8, 2
    s_add_u32 s23, s16, s10
    s_mul_i32 s16, s23, {448*1024}
    s_add_u32 s16, s16, {WS_W1Q if g1 else WS_W2Q}
    s_lshl_b32 s22, s11, 12
    s_lshl_b32 s25, s11, 10
    s_add_u32 s17, s16, s25
    s_add_u32 s16, s16, s22""")
    if g1:
        k(f"""v_lshrrev_b32 v2, 1, v6
        v_xor_b32 v2, v2, v7
        v_lshlrev_b32 v2, 4, v2
        v_lshl_add_u32 v{RD[0]}, v6, 7, v2
        v_xor_b32 v{RD[3]}, 64, v{RD[0]}""")
        k(f"""s_lshl_b32 s18, s19, 16
        s_add_u32 s18, s18, {WS_RP}
        s_mul_i32 s23, s23, 14
        s_mul_i32 s20, s19, 224
        s_add_u32 s20, s20, s23
        s_lshl_b32 s20, s20, 10
        s_add_u32 s20, s20, {WS_H}""")
        def frag_off(T, u): return T * 2048
    else:
        k(f"v_mov_b32 v{RD[0]}, v1\nv_add_u32 v{RD[3]}, 2048, v1")
        k(f"""s_mul_i32 s18, s19, 224
        s_mul_i32 s21, s8, 56
        s_add_u32 s18, s18, s21
        s_lshl_b32 s18, s18, 10
        s_add_u32 s18, s18, {WS_H}
        s_lshl_b32 s20, s19, 6
        s_lshl_b32 s21, s10, 4
        s_add_u32 s20, s20, s21
        s_lshl_b32 s20, s20, 10
        s_lshl_b32 s21, s8, 22
        s_add_u32 s20, s20, s21
        s_add_u32 s20, s20, {WS_P}""")
        def frag_off(T, u): return T * 256
    for sgi in range(1, nseg):
        k(f"v_add_u32 v{RD[sgi]}, {65536*sgi}, v{RD[0]}\nv_add_u32 v{RD[3+sgi]}, {65536*sgi}, v{RD[3]}")
    k("s_waitcnt lgkmcnt(0)")
    k.srd(12, 4, 5, WS_BYTES)
    ST = 16; TMP = 32; AF = 64; NAF = 8
    ACC = AF + NAF * 4
    nv = ACC + NT * 16
    vm = Q(k, "vmcnt", 63); lg = Q(k, "lgkmcnt", 15)
    blocks = gemm_blocks(NT, NG, P1)
    nblk = len(blocks)
    ops = []
    for b, (t, g) in enumerate(blocks):
        if b < 4: ops.append(("A", 0, b))
        elif b % 4 == 0: ops += [("A", b // 4, i) for i in range(4)]
        if t == 0:
            ops += [("B", 2 * g + u, st) for u in range(2) for st in range(2)]
    opi = {o: i for i, o in enumerate(ops)}
    def atag(b): return ("A", 0, b) if b < 4 else ("A", b // 4, 3)
    starts = [0, 1, 2] + list(range(4, nblk, SG))
    gend = {s: (starts[i + 1] if i + 1 < len(starts) else nblk) for i, s in enumerate(starts)}
    state = dict(next_op=0, free_upto=0, cert=0)
    def issue_op():
        o = ops[state["next_op"]]; state["next_op"] += 1
        if novm and state["next_op"] > 40: return
        if o[0] == "A":
            _, qd, i = o
            if qd == 0:
                k(f"s_add_u32 m0, s25, {i * 4096}")
                k("s_nop 0" if i == 0 else "s_add_u32 s17, s17, 4096")
                k(f"buffer_load_dwordx4 v4, s[12:15], s17 offen lds")
            else:
                if i == 0:
                    k(f"s_add_u32 m0, s22, {(qd * 4 % NB) * 4096}")
                    k(f"s_add_u32 s16, s16, 16384")
                k(f"buffer_load_dwordx4 v4, s[12:15], s16 offen offset:{1024*i} lds")
        else:
            _, s, st = o
            if s % 2 == 0 and st == 0 and s > 0: k("s_add_u32 s18, s18, 4096")
            k(f"buffer_load_dwordx4 {ar(8*s+4*st,4)}, v1, s[12:15], s18 offen offset:{2048*(s%2)+256*st}")
        vm.push(o)
    def ring_ok(o): return not (o[0] == "A" and o[1] * 4 + 3 - NB >= state["free_upto"])
    def can_issue(consumed):
        i = state["next_op"]
        if i >= len(ops): return False
        if i >= consumed + L: return False
        if vm.outstanding() >= 60: return False
        return ring_ok(ops[i])
    frags = [(b, u, T) for b in range(nblk) for u in range(2) for T in range(2)]
    def sync_for(bstart, cur_block):
        e = gend[bstart]
        while state["next_op"] <= opi[atag(e - 1)]:
            assert ring_ok(ops[state["next_op"]])
            issue_op()
        vm.wait([atag(e - 1)])
        k("s_barrier")
        state["cert"] = e; state["free_upto"] = cur_block
    def rd(fi, cur_block):
        b, u, T = frags[fi]
        if b >= state["cert"]: sync_for(b, cur_block)
        off = (b % NB) * 4096 + frag_off(T, u)
        k(f"ds_read_b128 {vr(AF+4*(fi%NAF),4)}, v{RD[3*u + off//65536]} offset:{off % 65536}")
        lg.push(("F", fi))
    filler = []
    tmpi = [0]
    def epi_tile(t, slot):
        out = []
        for st in range(2):
            a0 = ACC + t * 16 + st * 4; a1 = a0 + 8
            pk = TMP + (tmpi[0] % 2) * 4; e = TMP + 8 + (tmpi[0] % 2) * 12; tmpi[0] += 1
            prs = [a0, a0 + 2, a1, a1 + 2]
            if g1:
                c1 = 24 + st * 4; sd = c1 + 2
                src = [a0, a0+1, a0+2, a0+3, a1, a1+1, a1+2, a1+3]
                if t == NT - 1:
                    for i, p in enumerate(prs): out.append(f"v_pk_mul_f32 {vr(e+2*i,2)}, {vr(p,2)}, {vr(c1,2)}")
                    for i in range(8): out.append(f"v_exp_f32 v{e+i}, v{e+i}")
                    for i in range(4): out.append(f"v_pk_fma_f32 {vr(e+2*i,2)}, {vr(e+2*i,2)}, {vr(sd,2)}, {vr(sd,2)}")
                    for i in range(8): out.append(f"v_rcp_f32 v{e+i}, v{e+i}")
                    for i, p in enumerate(prs): out.append(f"v_pk_mul_f32 {vr(e+2*i,2)}, {vr(e+2*i,2)}, {vr(p,2)}")
                else:
                    for i in range(8): out.append(f"v_mul_f32 v{e+i}, v{src[i]}, v{c1}")
                    for i in range(8): out.append(f"v_exp_f32 v{e+i}, v{e+i}")
                    for i in range(8): out.append(f"v_fma_f32 v{e+i}, v{e+i}, v{sd}, v{sd}")
                    for i in range(8): out.append(f"v_rcp_f32 v{e+i}, v{e+i}")
                    for i in range(8): out.append(f"v_mul_f32 v{e+i}, v{e+i}, v{src[i]}")
                for i in range(4): out.append(f"v_cvt_pk_bf16_f32 v{pk+i}, v{e+2*i}, v{e+2*i+1}")
            else:
                for i, p in enumerate(prs): out.append(f"v_cvt_pk_bf16_f32 v{pk+i}, v{p}, v{p+1}")
            if not nostore:
                if st == 0 and t % 2 == 0 and t > 0: out.append("s_add_u32 s20, s20, 4096")
                out.append(("ST", f"buffer_store_dwordx4 {vr(pk,4)}, v1, s[12:15], s20 offen offset:{2048*(t%2)+256*st} {st_flags}"))
        for o in out: filler.append((slot, o))
    def stats_code(slot):
        o = []
        o += ["v_and_b32 v2, 3, v6", "v_lshrrev_b32 v3, 2, v6", "v_lshl_add_u32 v3, v3, 4, v6", "v_lshlrev_b32 v3, 2, v3"]
        for i in range(1, 4):
            o += [f"v_cmp_eq_u32 vcc, {i}, v2", "s_nop 1", f"v_cndmask_b32 v{ST}, v{ST}, v{ST+i}, vcc", f"v_cndmask_b32 v{ST+4}, v{ST+4}, v{ST+4+i}, vcc"]
        o += [("DS", f"ds_bpermute_b32 v{ST+1}, v3, v{ST}", "bp0"), ("DS", f"ds_bpermute_b32 v{ST+5}, v3, v{ST+4}", "bp1")]
        o += ["v_mov_b32 v2, 0x3727c5ac", "s_mov_b32 s24, 0x3a800000", "s_nop 0", "s_nop 0", "s_nop 0", "s_nop 0", ("WL", ["bp0", "bp1"])]
        for st in range(2): o += [f"v_fma_f32 v{ST+4*st}, v{ST+4*st+1}, s24, v2"]
        for st in range(2): o += [f"v_sqrt_f32 v{26+4*st}, v{ST+4*st}", f"v_rsq_f32 v{24+4*st}, v{ST+4*st}"]
        o += ["s_nop 0"]
        for st in range(2): o += [f"v_mov_b32 v{27+4*st}, v{26+4*st}", f"v_mul_f32 v{24+4*st}, 0xbfb8aa3b, v{24+4*st}"]
        for st in range(2): o += [f"v_mov_b32 v{25+4*st}, v{24+4*st}"]
        for x in o: filler.append((slot, x))
    def emit_filler(x):
        if isinstance(x, str): k(x)
        elif x[0] == "ST": k(x[1]); vm.push(("ST", len(vm.q)))
        elif x[0] == "DS": k(x[1]); lg.push(x[2])
        elif x[0] == "WL": lg.wait(x[1])
    for _ in range(pro): issue_op()
    if stamps: k.mark(0)
    for fi in range(4): rd(fi, 0)
    nread = 4
    slot = 0; since_v = vgap; last_st = -1000
    last_block_of_tile = {t: max(b for b, (tt, g) in enumerate(blocks) if tt == t) for t in range(NT)}
    fpos = 0
    for fi, (b, u, T) in enumerate(frags):
        t, g = blocks[b]; s = 2 * g + u
        lg.wait([("F", fi)])
        if stamps and fi == 4 * P1 * NG: k.mark(1)
        for st in range(2):
            if t == 0 and T == 0: vm.wait([("B", s, st)])
            a = ACC + t * 16 + T * 8 + st * 4
            c = vr(a, 4) if s > 0 else "0"
            k(f"v_mfma_f32_16x16x32_bf16 {vr(a,4)}, {vr(AF+4*(fi%NAF),4)}, {ar(8*s+4*st,4)}, {c}")
            slot += 1; since_v += 1
            if st == 0:
                nrd = 0
                while nread < len(frags) and nread <= fi + LA and nrd < 2:
                    rd(nread, b); nread += 1; nrd += 1
            consumed = opi[atag(b)]
            if since_v >= vgap and can_issue(consumed) and st == 1:
                issue_op(); since_v = 0
            n = 0
            while fpos < len(filler) and filler[fpos][0] <= slot:
                x = filler[fpos][1]
                cost = 0
                if isinstance(x, str):
                    cost = 8 if x.split()[0] in ("v_exp_f32", "v_rcp_f32", "v_sqrt_f32", "v_rsq_f32") else 4 if x.startswith("v_") else 1
                elif x[0] == "ST":
                    if slot - last_st < stgap: break
                    cost = 4
                else: cost = 4
                if n + cost > fill: break
                if not isinstance(x, str) and x[0] == "ST": last_st = slot
                emit_filler(x); fpos += 1; n += cost
        if g1 and t == 0 and T == 1:
            for st in range(2):
                c = vr(ST + 4 * st, 4) if s > 0 else "0"
                k(f"v_mfma_f32_16x16x32_bf16 {vr(ST+4*st,4)}, {ar(8*s+4*st,4)}, {ar(8*s+4*st,4)}, {c}")
                slot += 1
            if s == NS - 1: stats_code(slot + 8)
        if u == 1 and T == 1 and b == last_block_of_tile[t]:
            epi_tile(t, slot + 8)
    if stamps: k.mark(2)
    k("s_nop 7")
    while fpos < len(filler):
        emit_filler(filler[fpos][1]); fpos += 1
    if stamps: k.mark(3); k.stamp_end()
    k.label(f"END_{name}")
    k("s_endpgm")
    return k, nv, 8 * NS, 96

if __name__ == "__main__":
    V = eval(open("variants.txt").read())
    for kind, tag, kw in V:
        kk = gen_gemm(f"{kind}_kernel", kind, stamps=True, **kw)
        open(f"t_{kind}A_{tag}.s", "w").write(make_file(f"; test P1={kw.get('P1',5)}", [(f"{kind}_kernel", 256, 256, kw.get("NB", 32) * 4096)] * 4, [kk]))
    print(" ".join(f"t_{kind}A_{tag}.s" for kind, tag, kw in V))
    print(", ".join(f'"dev/t_{kind}A_{tag}.s"' for kind, tag, kw in V))
```

```python
from asmgen import *
from layout import *
import struct, math
def fl(x): return "0x%08x" % struct.unpack("<I", struct.pack("<f", x))[0]
SC = math.sqrt(2.0 / 1024)

def interleave(k, mf, fill, per, tail_nops=0):
    fill = list(fill); i = 0
    for m in mf:
        k(m)
        for _ in range(per):
            if i < len(fill): k(fill[i]); i += 1
    rest = len(fill) - i
    while i < len(fill): k(fill[i]); i += 1
    return rest

def trig_frag(k, xl, base, ys, tmp, cos_dst=None, sin_dst=None, neg_sin=False, agpr=True):
    for jj in range(4):
        a0, a1, c0, c1, s0, s1 = range(tmp, tmp + 6)
        k(f"v_fmamk_f32 v{a0}, v{xl}, {fl(ys[2*jj])}, v{base}\nv_fmamk_f32 v{a1}, v{xl}, {fl(ys[2*jj+1])}, v{base}")
        if cos_dst is not None: k(f"v_cos_f32 v{c0}, v{a0}\nv_cos_f32 v{c1}, v{a1}")
        if sin_dst is not None: k(f"v_sin_f32 v{s0}, v{a0}\nv_sin_f32 v{s1}, v{a1}")
        else: k("s_nop 0")
        n = "-" if neg_sin else ""
        if agpr:
            if cos_dst is not None: k(f"v_cvt_pk_bf16_f32 v{c0}, v{c0}, v{c1}")
            else: k("s_nop 0")
            if sin_dst is not None: k(f"v_cvt_pk_bf16_f32 v{s0}, {n}v{s0}, {n}v{s1}")
            if cos_dst is not None: k(f"v_accvgpr_write_b32 a{cos_dst+jj}, v{c0}")
            if sin_dst is not None: k(f"v_accvgpr_write_b32 a{sin_dst+jj}, v{s0}")
        else:
            if cos_dst is not None: k(f"v_cvt_pk_bf16_f32 v{cos_dst+jj}, v{c0}, v{c1}")
            else: k("s_nop 0")
            if sin_dst is not None: k(f"v_cvt_pk_bf16_f32 v{sin_dst+jj}, {n}v{s0}, {n}v{s1}")

def cmul_pk(re, im, tr, ti, tmp, bc=None, conj=False):
    m2 = m3 = ""
    return [f"v_pk_mul_f32 {vr(tmp,2)}, {vr(im,2)}, {vr(ti,2)}",
            f"v_pk_mul_f32 {vr(im,2)}, {vr(im,2)}, {vr(tr,2)}",
            f"v_pk_fma_f32 {vr(im,2)}, {vr(re,2)}, {vr(ti,2)}, {vr(im,2)}",
            f"v_pk_fma_f32 {vr(re,2)}, {vr(re,2)}, {vr(tr,2)}, {vr(tmp,2)} neg_lo:[0,0,1] neg_hi:[0,0,1]"]
def cmul_batch(k, items, tmpbase, nt=4):
    for i in range(0, len(items), nt):
        grp = [cmul_pk(*it, tmpbase + 2 * j) for j, it in enumerate(items[i:i + nt])]
        for step in range(4):
            for g in grp: k(g[step])

A_C1, A_S1, A_M1, A_M2, A_M3 = 0, 8, 16, 24, 32
RAW, ZLO, ACC, OP, TW = 16, 80, 144, 208, 224
MF = "v_mfma_f32_32x32x16_bf16"

def consts(k, strided):
    k(f"""v_and_b32 v6, 31, v5
    v_lshrrev_b32 v7, 5, v5
    v_cvt_f32_u32 v6, v6
    v_cvt_f32_u32 v7, v7
    v_mul_f32 v8, {fl(1/32)}, v6
    v_mul_f32 v9, v8, v7""")
    for c in range(2):
        trig_frag(k, 8, 9, [16 * c + 2 * j for j in range(8)], 10, A_C1 + 4 * c, A_S1 + 4 * c, neg_sin=True)
    om = 4 if strided else 16
    k(f"v_mul_f32 v8, {fl(1/1024)}, v6\nv_mul_f32 v9, v8, v7\nv_mul_f32 v9, {fl(om)}, v9")
    if strided: ys = [8 * (r >> 2) + (r & 3) for r in range(16)]
    else: ys = [8 * (i & 1) + (i >> 1) for i in range(16)]
    for i in range(16): k(f"v_fmamk_f32 v{TW+16+i}, v8, {fl(ys[i])}, v9")
    for i in range(16): k(f"v_cos_f32 v{TW+i}, v{TW+16+i}")
    for i in range(16): k(f"v_sin_f32 v{TW+16+i}, v{TW+16+i}")
    for i in range(16): k(f"v_mul_f32 v{TW+i}, {fl(SC)}, v{TW+i}")
    for i in range(16): k(f"v_mul_f32 v{TW+16+i}, {fl(-SC)}, v{TW+16+i}")
    if strided:
        k("""v_and_b32 v8, 4, v5
        v_lshlrev_b32 v8, 1, v8
        v_bfe_u32 v9, v5, 3, 2
        v_lshl_add_u32 v8, v9, 1, v8
        v_bfe_u32 v9, v5, 1, 1
        v_add_u32 v8, v8, v9""")
    else:
        k("v_bfe_u32 v8, v5, 1, 4")
    k(f"""v_cvt_f32_u32 v8, v8
    v_and_b32 v6, 1, v5
    v_cvt_f32_u32 v9, v6
    v_mul_f32 v8, {fl(1/32)}, v8
    v_mul_f32 v9, 0.25, v9
    v_mul_f32 v7, {fl(om)}, v7
    v_fmac_f32 v9, v8, v7""".replace("0.25", fl(0.25)))
    for c in range(2):
        if strided: ys = [16 * c + 8 * (j >> 2) + (j & 3) for j in range(8)]
        else: ys = [8 * (j & 1) + 4 * c + (j >> 1) for j in range(8)]
        trig_frag(k, 8, 9, ys, 10, A_M1 + 4 * c, A_M2 + 4 * c)
    k("v_mov_b32 v10, 0x3f803f80\nv_lshlrev_b32 v11, 31, v6")
    if strided:
        k("v_xor_b32 v11, v10, v11")
        for j in range(4): k(f"v_accvgpr_write_b32 a{A_M3+j}, v11")
    else:
        k("v_lshrrev_b32 v12, 16, v11\nv_or_b32 v11, v11, v12\nv_xor_b32 v11, v10, v11")
        for j in range(4): k(f"v_accvgpr_write_b32 a{A_M3+j}, v{11 if j & 1 else 10}")
    k("s_mov_b32 s30, 0x05040100\ns_mov_b32 s31, 0x07060302")

def perms(t):
    o = OP + (t & 1) * 8
    return [f"v_perm_b32 v{o+4*c+jj}, v{RAW+4*(8*c+2*jj+1)+(t>>1)}, v{RAW+4*(8*c+2*jj)+(t>>1)}, s{30+(t&1)}" for c in range(2) for jj in range(4)]
def st1(t):
    o = OP + (t & 1) * 8; a = ACC + (t & 1) * 32
    return [f"{MF} {vr(a,16)}, {vr(o,4)}, {ar(A_C1,4)}, 0", f"{MF} {vr(a+16,16)}, {vr(o,4)}, {ar(A_S1,4)}, 0",
            f"{MF} {vr(a,16)}, {vr(o+4,4)}, {ar(A_C1+4,4)}, {vr(a,16)}", f"{MF} {vr(a+16,16)}, {vr(o+4,4)}, {ar(A_S1+4,4)}, {vr(a+16,16)}"]

def role_row(k, isx, P1g2):
    rs = 65536 if isx else 2048
    k(f"""v_bfe_u32 v1, v5, 1, 1
    v_bfe_u32 v2, v5, 3, 2
    v_lshl_add_u32 v1, v2, 1, v1
    v_lshlrev_b32 v1, {16 if isx else 11}, v1
    v_lshrrev_b32 v2, 5, v5
    v_lshl_add_u32 v1, v2, 6, v1
    v_bfe_u32 v2, v5, 2, 1
    v_lshl_add_u32 v1, v2, 5, v1
    v_and_b32 v2, 1, v5
    v_lshl_add_u32 v1, v2, 4, v1""")
    if isx: k("s_lshr_b32 s16, s3, 5\ns_lshl_b32 s16, s16, 8\ns_and_b32 s17, s3, 31\ns_add_u32 s16, s16, s17\ns_lshl_b32 s16, s16, 11")
    else: k("s_lshl_b32 s16, s3, 14")
    for u in range(16): k(f"buffer_load_dwordx4 {vr(RAW+4*u,4)}, v1, s[8:11], s16 offen offset:{128*u}")
    consts(k, False)
    def Z(sg, ri, t): return (ZLO if t < 4 else RAW) + (2 * sg + ri) * 4 + (t & 3)
    def cvts(t):
        a = ACC + (t & 1) * 32
        return [f"v_cvt_pk_bf16_f32 v{Z(sg,ri,t)}, v{a+16*ri+2*sg}, v{a+16*ri+2*sg+1}" for sg in range(8) for ri in range(2)]
    k("s_waitcnt vmcnt(0)")
    for p in perms(0): k(p)
    k("s_nop 1")
    for t in range(8):
        fill = (perms(t + 1) if t < 7 else []) + (cvts(t - 1) if t > 0 else [])
        interleave(k, st1(t), fill, 4)
        k("s_nop 11" if t in (0, 7) else "s_nop 3")
        a = ACC + (t & 1) * 32
        cmul_batch(k, [(a + 2 * sg, a + 16 + 2 * sg, TW + 2 * t, TW + 16 + 2 * t) for sg in range(8)], 8)
    for c in cvts(7): k(c)
    k(f"""v_cmp_gt_u32 vcc, 2, v5
    v_mov_b32 v6, 1.0
    v_mov_b32 v7, 0
    v_cndmask_b32 v6, v6, v7, vcc
    v_cmp_eq_u32 vcc, 1, v5
    v_mov_b32 v8, {fl(math.sqrt(0.5))}
    s_nop 0
    v_cndmask_b32 v7, v7, v8, vcc
    v_cmp_eq_u32 vcc, 0, v5
    v_mov_b32 v8, 0.5
    v_bfrev_b32 v9, -2""")
    if isx: k("v_mov_b32 v4, 0\nv_cndmask_b32 v4, v9, v4, vcc")
    else: k("s_nop 0\nv_cndmask_b32 v7, v7, v8, vcc")
    OUT = [ACC, ACC + 16, ACC + 32, ACC + 48, OP, TW, TW + 16, ZLO]
    SP = [None] * 8
    def st2(sg):
        o = OUT[sg]; sp = 48 + 16 * (sg & 1)
        zl = lambda ri: vr(ZLO + (2 * sg + ri) * 4, 4); zh = lambda ri: vr(RAW + (2 * sg + ri) * 4, 4)
        return [f"{MF} {ar(sp,16)}, {zl(0)}, {ar(A_M3,4)}, 0", f"{MF} {vr(o,16)}, {zl(0)}, {ar(A_M1,4)}, 0",
                f"{MF} {ar(sp,16)}, {zh(0)}, {ar(A_M3,4)}, {ar(sp,16)}", f"{MF} {vr(o,16)}, {zh(0)}, {ar(A_M1+4,4)}, {vr(o,16)}",
                f"{MF} {vr(o,16)}, {zl(1)}, {ar(A_M2,4)}, {vr(o,16)}", f"{MF} {vr(o,16)}, {zh(1)}, {ar(A_M2+4,4)}, {vr(o,16)}"]
    G = RAW
    def post(sg):
        o = OUT[sg]; sp = 48 + 16 * (sg & 1)
        f = [f"v_accvgpr_read_b32 v2, a{sp}", f"v_mul_f32 v{o}, v{o}, v6", f"v_fmac_f32 v{o}, v2, v7"]
        if isx:
            f += [f"v_mul_f32 v3, {fl(SC/2)}, v2", f"buffer_store_dword v3, v4, s[12:15], s18 offen offset:{4*sg}"]
            f += [f"v_mul_f32 v{8+sg}, v{o+1}, v{o+1}"] + [f"v_fmac_f32 v{8+sg}, v{o+r}, v{o+r}" for r in [2,3,4,5,6,7,8,9,10,11,12,13,14,15,0]]
        return f
    if isx: k(f"s_lshl_b32 s18, s3, 5\ns_add_u32 s18, s18, {WS_MEAN}")
    k("s_nop 1")
    for sg in range(8):
        mf = st2(sg)
        k(mf[0]); k(mf[1])
        if sg > 0: k("s_nop 7\ns_nop 1")
        interleave(k, mf[2:], post(sg - 1) if sg > 0 else [], 5)
    k("s_nop 11")
    for f in post(7): k(f)
    if isx:
        k("""v_bfe_u32 v1, v5, 3, 2
        v_lshlrev_b32 v1, 12, v1
        v_lshrrev_b32 v2, 5, v5
        v_lshl_add_u32 v1, v2, 9, v1
        v_and_b32 v2, 7, v5
        v_lshl_add_u32 v1, v2, 4, v1""")
        k(f"s_lshl_b32 s16, s3, 14\ns_add_u32 s16, s16, {WS_RN}")
        for i in range(4): k(f"v_permlane32_swap_b32 v{8+2*i}, v{9+2*i}")
        for i in range(4): k(f"v_add_f32 v{8+2*i}, v{8+2*i}, v{9+2*i}")
        k("s_nop 1")
        for i in range(2): k(f"v_permlane16_swap_b32 v{8+4*i}, v{10+4*i}")
        for i in range(2): k(f"v_add_f32 v{8+4*i}, v{8+4*i}, v{10+4*i}")
        for sh in (8, 4, 2, 1):
            k("s_nop 1")
            for i in range(2): k(f"v_add_f32_dpp v{8+4*i}, v{8+4*i}, v{8+4*i} row_ror:{sh} row_mask:0xf bank_mask:0xf")
        k(f"v_mov_b32 v2, {fl(1e-5)}")
        for i in range(2): k(f"v_fmamk_f32 v{8+4*i}, v{8+4*i}, {fl(1/1024)}, v2")
        for i in range(2): k(f"v_rsq_f32 v{9+4*i}, v{8+4*i}\nv_sqrt_f32 v{10+4*i}, v{8+4*i}")
        k("s_nop 1")
        for sg in range(8):
            row16 = [0, 2, 1, 3][sg & 3]
            k(f"v_readlane_b32 s{40+2*sg}, v{9+4*(sg>>2)}, {16*row16}")
        k(f"""v_bfe_u32 v2, v5, 4, 1
        v_lshlrev_b32 v2, 5, v2
        v_bfe_u32 v3, v5, 5, 1
        v_lshl_add_u32 v2, v3, 4, v2
        v_and_b32 v3, 15, v5
        v_cmp_eq_u32 vcc, 0, v3
        v_bfrev_b32 v3, -2
        s_lshr_b32 s18, s3, 2
        s_lshl_b32 s18, s18, 7
        v_cndmask_b32 v2, v3, v2, vcc
        s_and_b32 s19, s3, 3
        s_lshl2_add_u32 s18, s19, s18
        s_add_u32 s18, s18, {WS_STD}
        buffer_store_dword v10, v2, s[12:15], s18 offen
        buffer_store_dword v14, v2, s[12:15], s18 offen offset:64""")
        for sg in range(8):
            for r in range(0, 16, 2):
                k(f"v_pk_mul_f32 {vr(OUT[sg]+r,2)}, {vr(OUT[sg]+r,2)}, s[{40+2*sg}:{41+2*sg}] op_sel_hi:[1,0]")
    else:
        P1 = P1g2; assert P1 % 2 == 0
        k(f"""v_bfe_u32 v1, v5, 3, 2
        s_mov_b32 s17, {448*1024}
        v_mul_lo_u32 v1, v1, s17
        v_bfe_u32 v2, v5, 2, 1
        v_lshl_add_u32 v1, v2, 8, v1
        v_and_b32 v2, 3, v5
        v_lshl_add_u32 v1, v2, 4, v1
        v_lshrrev_b32 v2, 5, v5
        v_mul_u32_u24 v3, {14*4096}, v2
        v_add_u32 v3, v3, v1
        v_lshl_add_u32 v1, v2, 12, v1""")
        k(f"""s_mul_i32 s16, s3, 586
        s_lshr_b32 s16, s16, 16
        s_mul_i32 s17, s16, 112
        s_sub_u32 s17, s3, s17
        s_lshr_b32 s18, s17, 3
        s_and_b32 s17, s17, 7
        s_mul_i32 s16, s16, {4*448*1024}
        s_lshl_b32 s17, s17, 9
        s_add_u32 s16, s16, s17
        s_add_u32 s16, s16, {WS_W2Q}
        s_mul_i32 s19, s18, {P1*4096}
        s_add_u32 s19, s19, s16
        s_lshl_b32 s18, s18, 12
        s_add_u32 s18, s18, s16""")
        for Gq in range(4):
            if 2 * Gq < P1: k(f"s_add_u32 s{20+Gq}, s19, {2*Gq*4096}")
            else: k(f"s_add_u32 s{20+Gq}, s18, {(P1*14 + (2*Gq-P1)*14)*4096}")
    for r in range(16):
        g = G + 4 * r
        for p in range(4): k(f"v_cvt_pk_bf16_f32 v{g+p}, v{OUT[2*p]+r}, v{OUT[2*p+1]+r}")
        if isx: k(f"buffer_store_dwordx4 {vr(g,4)}, v1, s[12:15], s16 offen offset:{(8*(r>>2)+(r&3))*128}")
        else: k(f"buffer_store_dwordx4 {vr(g,4)}, v{1 if 2*(r>>2) < P1g2 else 3}, s[12:15], s{20+(r>>2)} offen offset:{(r&3)*64}")

def role_w1(k, P1):
    k(f"""v_lshrrev_b32 v1, 2, v5
    v_mul_u32_u24 v1, 7168, v1
    v_lshrrev_b32 v2, 4, v5
    v_xor_b32 v2, v2, v5
    v_and_b32 v2, 3, v2
    v_lshl_add_u32 v1, v2, 4, v1
    s_mul_i32 s16, s24, {256*7168}
    s_lshl_b32 s17, s3, 6
    s_add_u32 s16, s16, s17
    s_lshl_b32 s17, s24, 14""")
    for i in range(16):
        k(f"s_add_u32 m0, s17, {1024*i}")
        k("s_nop 0" if i == 0 else f"s_add_u32 s16, s16, {16*7168}")
        k("buffer_load_dwordx4 v1, s[8:11], s16 offen lds")
    consts(k, True)
    k("""v_bfe_u32 v2, v5, 2, 2
    v_xor_b32 v2, s24, v2
    v_lshlrev_b32 v2, 4, v2
    v_lshl_add_u32 v2, v5, 6, v2
    s_waitcnt vmcnt(0)
    s_barrier""")
    for u in range(16): k(f"ds_read_b128 {vr(RAW+4*u,4)}, v2 offset:{4096*u}")
    k(f"""s_mul_i32 s16, s3, 9363
    s_lshr_b32 s16, s16, 16
    s_mul_i32 s17, s16, 7
    s_sub_u32 s17, s3, s17
    s_mul_i32 s16, s16, {448*1024}
    s_add_u32 s16, s16, {WS_W1Q}
    s_lshl_b32 s18, s24, 9
    s_add_u32 s16, s16, s18
    s_lshl_b32 s18, s17, 12
    s_lshl_b32 s19, s17, 16
    s_cmp_lt_u32 s17, {P1}
    s_cselect_b32 s18, s18, s19
    s_cselect_b32 s19, {P1}, 1
    s_lshl_b32 s19, s19, 12
    s_add_u32 s16, s16, s18
    s_lshl2_add_u32 s17, s19, s16
    v_lshrrev_b32 v1, 5, v5
    v_bfe_u32 v3, v5, 3, 2
    v_lshl_add_u32 v1, v1, 3, v3
    v_mul_lo_u32 v1, v1, s19
    s_lshl_b32 s18, s24, 1
    v_and_b32 v3, 7, v5
    v_xor_b32 v3, s18, v3
    v_lshl_add_u32 v1, v3, 4, v1
    v_xor_b32 v3, 16, v1
    v_cmp_eq_u32 vcc, 0, v5
    v_mov_b32 v6, 1.0
    v_mov_b32 v7, 0
    v_mov_b32 v4, {fl(math.sqrt(0.5))}
    v_cndmask_b32 v6, v6, v7, vcc
    v_cndmask_b32 v7, v7, v4, vcc""")
    ZR = ZLO; OUT = ZLO + 32; G = ZLO + 16
    def cvts(t):
        a = ACC + (t & 1) * 32
        return [f"v_cvt_pk_bf16_f32 v{ZR+8*ri+i}, v{a+16*ri+2*i}, v{a+16*ri+2*i+1}" for ri in range(2) for i in range(8)]
    def st2(t):
        o = OUT + 16 * (t & 1); sp = 48 + 16 * (t & 1)
        return [f"{MF} {ar(sp,16)}, {ar(A_M3,4)}, {vr(ZR,4)}, 0", f"{MF} {vr(o,16)}, {ar(A_M1,4)}, {vr(ZR,4)}, 0",
                f"{MF} {ar(sp,16)}, {ar(A_M3,4)}, {vr(ZR+4,4)}, {ar(sp,16)}", f"{MF} {vr(o,16)}, {ar(A_M1+4,4)}, {vr(ZR+4,4)}, {vr(o,16)}",
                f"{MF} {vr(o,16)}, {ar(A_M2,4)}, {vr(ZR+8,4)}, {vr(o,16)}", f"{MF} {vr(o,16)}, {ar(A_M2+4,4)}, {vr(ZR+12,4)}, {vr(o,16)}"]
    def post(t):
        o = OUT + 16 * (t & 1); sp = 48 + 16 * (t & 1); g = G + 8 * (t & 1)
        f = [f"v_accvgpr_read_b32 v4, a{sp+1}", f"v_mul_f32 v{o+1}, v{o+1}, v6", f"v_fmac_f32 v{o+1}, v4, v7"]
        for c in (1, 0):
            f += [f"v_cvt_pk_bf16_f32 v{g+4*c+i}, v{o+8*c+2*i}, v{o+8*c+2*i+1}" for i in range(4)]
            f += [f"buffer_store_dwordx4 {vr(g+4*c,4)}, v{3 if t & 2 else 1}, s[12:15], s{16+c} offen offset:{(16*(t>>2)+(t&3))*128}"]
        return f
    k("s_waitcnt lgkmcnt(0)")
    for p in perms(0): k(p)
    k("s_nop 1")
    interleave(k, st1(0), perms(1), 2)
    k("s_nop 11")
    for t in range(8):
        a = ACC + (t & 1) * 32
        cmul_batch(k, [(a + 2 * i, a + 16 + 2 * i, TW + 2 * i, TW + 16 + 2 * i) for i in range(8)], 8)
        if t < 7:
            interleave(k, st1(t + 1), cvts(t), 4)
        else:
            for c in cvts(t): k(c)
        k("s_nop 1")
        fill = (post(t - 1) if t > 0 else []) + (perms(t + 2) if t < 6 else [])
        interleave(k, st2(t), fill, 4)
        k("s_nop 3")
    k("s_nop 11")
    for f in post(7): k(f)

def role_wt(k):
    k(f"""s_lshr_b32 s16, s3, 2
    s_and_b32 s17, s3, 3
    s_mul_i32 s18, s16, 1026
    s_lshl_b32 s19, s17, 8
    s_add_u32 s18, s18, s19
    v_lshlrev_b32 v1, 1, v5
    v_mov_b32 v2, v1
    s_cmp_lg_u32 s17, 0
    s_cbranch_scc1 WT_A
    v_cmp_eq_u32 vcc, 0, v5
    v_mov_b32 v3, 1024
    s_nop 0
    v_cndmask_b32 v2, v2, v3, vcc""")
    k.label("WT_A")
    B = 16
    for k2w in range(32):
        h = (k2w >> 2) & 1; r = 4 * (k2w >> 3) + (k2w & 3)
        for half in range(2):
            for ri in range(2):
                d = B + (r & 1) * 64 + half * 32 + h * 16 + ri * 8 + (r >> 1)
                k(f"buffer_load_ushort v{d}, v{1 if half else 2}, s[{8+12*ri}:{11+12*ri}], s18 offen offset:{128*half}")
        if k2w < 31: k(f"s_add_u32 s18, s18, {64*1026}")
        if k2w % 8 == 7 and k2w < 31: k("s_waitcnt vmcnt(16)")
    k(f"""v_and_b32 v1, 31, v5
    v_lshlrev_b32 v1, 15, v1
    v_lshrrev_b32 v2, 5, v5
    v_lshl_add_u32 v1, v2, 13, v1
    s_lshl_b32 s17, s17, 20
    s_and_b32 s19, s16, 1
    s_lshl_b32 s19, s19, 12
    s_add_u32 s17, s17, s19
    s_lshr_b32 s19, s16, 1
    s_lshl_b32 s19, s19, 7
    s_add_u32 s17, s17, s19
    s_add_u32 s17, s17, {WS_WT}
    s_add_u32 s19, s17, 16384
    s_waitcnt vmcnt(0)""")
    for half in range(2):
        for i in range(8):
            for j in range(4): k(f"v_lshl_or_b32 v{B+half*32+4*i+j}, v{B+64+half*32+4*i+j}, 16, v{B+half*32+4*i+j}")
            k(f"buffer_store_dwordx4 {vr(B+half*32+4*i,4)}, v1, s[12:15], s{19 if half else 17} offen offset:{16*i}")

def gen_k1(name="k1_kernel", stamps=False, P1g1=4, P1g2=6, tables=None):
    k = K(name)
    NX, NW1, NW2, NWT, NTB = 64, 112, 112, 64, 16
    tot = NX + NW1 + NW2 + NWT + NTB
    k(f"s_cmp_ge_u32 s2, {tot}\ns_cbranch_scc1 END_{name}")
    if stamps: k.stamp_begin()
    k("s_load_dwordx16 s[32:47], s[0:1], 0\ns_load_dwordx2 s[4:5], s[0:1], 64")
    k("v_lshrrev_b32 v1, 6, v0\nv_and_b32 v5, 63, v0\nv_readfirstlane_b32 s24, v1")
    k("s_waitcnt lgkmcnt(0)")
    k.srd(12, 4, 5, WS_BYTES)
    k(f"s_cmp_ge_u32 s2, {NX}\ns_cbranch_scc1 K1_N1")
    k.srd(8, 32, 33, 4194304)
    k("s_lshl2_add_u32 s3, s2, s24")
    role_row(k, True, P1g2)
    k("s_branch K1_DONE")
    k.label("K1_N1")
    k(f"s_cmp_ge_u32 s2, {NX+NWT}\ns_cbranch_scc1 K1_N2")
    k.srd(8, 34, 35, 2048 * 1026); k.srd(20, 36, 37, 2048 * 1026)
    k(f"s_sub_u32 s3, s2, {NX}\ns_lshl2_add_u32 s3, s3, s24")
    role_wt(k)
    k("s_branch K1_DONE")
    k.label("K1_N2")
    k(f"s_cmp_ge_u32 s2, {NX+NWT+NTB}\ns_cbranch_scc1 K1_N3")
    k(f"s_sub_u32 s3, s2, {NX+NWT}\ns_lshl2_add_u32 s3, s3, s24")
    if tables: tables(k)
    k("s_branch K1_DONE")
    k.label("K1_N3")
    k(f"s_cmp_ge_u32 s2, {NX+NWT+NTB+NW1}\ns_cbranch_scc1 K1_N4")
    k.srd(8, 40, 41, 1024 * 7168)
    k(f"s_sub_u32 s3, s2, {NX+NWT+NTB}")
    role_w1(k, P1g1)
    k("s_branch K1_DONE")
    k.label("K1_N4")
    k.srd(8, 42, 43, 3584 * 2048)
    k(f"s_sub_u32 s3, s2, {NX+NWT+NTB+NW1}\ns_lshl2_add_u32 s3, s3, s24")
    role_row(k, False, P1g2)
    k.label("K1_DONE")
    if stamps: k.stamp_end()
    k.label(f"END_{name}")
    k("s_endpgm")
    return k, 256, 80, 96, tot

if __name__ == "__main__":
    kk = gen_k1(stamps=True)
    open("t_k1.s", "w").write(make_file("; test", [("k1_kernel", kk[4], 256, 65536)], [kk[:4]]))
```

```python
from asmgen import *
from layout import *
from gen_k1 import fl, interleave, cmul_batch, MF
from gen_gemm import Q
MF16 = "v_mfma_f32_16x16x32_bf16"
L_IN, L_TAB, L_EX = 0, 32768, 32768 + 88 * 1024
K2_LDS = L_EX + 32768

def gen_k2(name="k2_kernel", stamps=False, st_flags=""):
    k = K(name)
    k(f"s_cmp_ge_u32 s2, 128\ns_cbranch_scc1 END_{name}")
    if stamps: k.stamp_begin()
    k("s_load_dwordx2 s[4:5], s[0:1], 64")
    k("v_lshrrev_b32 v1, 6, v0\nv_and_b32 v5, 63, v0\nv_readfirstlane_b32 s24, v1\nv_lshlrev_b32 v4, 4, v5")
    k("""v_lshrrev_b32 v1, 3, v5
    v_lshlrev_b32 v1, 14, v1
    v_lshrrev_b32 v2, 4, v5
    v_and_b32 v3, 7, v5
    v_xor_b32 v2, v2, v3
    v_lshl_add_u32 v1, v2, 4, v1
    v_xor_b32 v2, 64, v1""")
    k(f"""s_lshl_b32 s16, s24, 19
    s_lshl_b32 s17, s2, 7
    s_add_u32 s16, s16, s17
    s_add_u32 s16, s16, {WS_RN}
    s_lshl_b32 s17, s24, 12
    s_lshr_b32 s25, s24, 1
    s_and_b32 s26, s24, 1
    s_mul_i32 s18, s24, 3072""")
    k("s_waitcnt lgkmcnt(0)")
    k.srd(12, 4, 5, WS_BYTES)
    vm = Q(k, "vmcnt", 63); lg = Q(k, "lgkmcnt", 15)
    for i in range(4):
        k(f"s_add_u32 m0, s17, {L_IN + 1024*i}")
        k("s_nop 0" if i == 0 else "s_add_u32 s16, s16, 0x20000")
        k(f"buffer_load_dwordx4 v{1+(i&1)}, s[12:15], s16 offen lds"); vm.push(("IN", i))
    def tabdma(tag, base, sreg, n):
        k(f"s_add_u32 m0, s{sreg}, {L_TAB + base}\ns_add_u32 s19, s{sreg}, {WS_TAB + base}")
        for i in range(n):
            k(f"buffer_load_dwordx4 v4, s[12:15], s19 offen offset:{1024*i} lds"); vm.push((tag, i))
    tabdma("A", 0, 18, 3)
    tabdma("B", 24576, 18, 3)
    U, CB, ACC, TW, Z, WR, WU, F32, RF, A4, SD, SEL = 16, 48, 96, 128, 160, 176, 192, 224, 192, 48, 248, 252
    k(f"""v_and_b32 v6, 31, v5
    v_lshrrev_b32 v7, 5, v5
    v_lshlrev_b32 v3, 7, v6
    v_lshl_add_u32 v3, v7, 6, v3
    s_lshl_b32 s19, s2, 15
    s_add_u32 s19, s19, s17
    s_add_u32 s19, s19, {WS_WT}""")
    for i in range(4):
        k(f"buffer_load_dwordx4 {vr(WR+4*i,4)}, v3, s[12:15], s19 offen offset:{16*i}"); vm.push(("W", i))
    k("s_lshl_b32 s20, s24, 11")
    tabdma("C", 49152, 20, 2)
    tabdma("D", 65536, 18, 3)
    k(f"""v_bfe_u32 v8, v5, 3, 1
    v_lshrrev_b32 v9, 4, v5
    v_lshl_add_u32 v8, v8, 3, v9
    v_and_b32 v10, 7, v5
    v_lshlrev_b32 v11, 7, v8
    v_lshl_add_u32 v11, v10, 4, v11
    s_lshl_b32 s19, s25, 11
    s_lshl_b32 s20, s26, 9
    s_add_u32 s19, s19, s20
    s_add_u32 s19, s19, {WS_STD}
    buffer_load_dwordx4 {vr(SD,4)}, v11, s[12:15], s19 offen"""); vm.push("SD")
    k(f"""v_lshlrev_b32 v12, 16, v8
    v_lshl_add_u32 v12, v10, 4, v12
    s_lshl_b32 s21, s25, 20
    s_lshl_b32 s20, s26, 18
    s_add_u32 s21, s21, s20
    s_lshl_b32 s20, s2, 9
    s_add_u32 s21, s21, s20
    s_add_u32 s21, s21, {WS_RP}""")
    k(f"""v_bfe_u32 v1, v5, 1, 3
    s_lshl_b32 s20, s25, 1
    v_xor_b32 v2, s20, v1
    v_lshlrev_b32 v2, 4, v2
    v_lshl_add_u32 v2, v5, 7, v2
    v_xor_b32 v3, 16, v2""")
    k(f"""v_and_b32 v13, 15, v5
    v_lshlrev_b32 v14, 12, v9
    v_lshl_add_u32 v14, v13, 7, v14
    v_lshl_add_u32 v14, v1, 4, v14
    s_lshr_b32 s20, s25, 1
    s_lshl_b32 s20, s20, 14
    s_lshl_b32 s22, s26, 11
    s_add_u32 s20, s20, s22
    v_add_u32 v14, s20, v14""")
    k(f"""s_mul_i32 s20, s26, 12288
    s_add_u32 s20, s20, {L_TAB}
    v_add_u32 v6, s20, v4
    s_lshl_b32 s20, s26, 13
    s_add_u32 s20, s20, {L_TAB + T_T1}
    v_add_u32 v7, s20, v4
    v_add_u32 v8, {L_TAB + T_B2}, v4
    s_mul_i32 s20, s25, 6144
    s_add_u32 s20, s20, {L_TAB + T_B4}
    v_add_u32 v11, s20, v4""")
    k(f"""s_and_b32 s20, s25, 1
    s_lshl_b32 s20, s20, 1
    v_bfe_u32 v15, v5, 3, 1
    v_add_u32 v15, s20, v15
    v_cmp_eq_u32 vcc, v15, v9
    v_and_b32 v15, 1, v5
    v_lshlrev_b32 v15, 4, v15
    v_mov_b32 v1, 0x3f80
    v_lshlrev_b32 v15, v15, v1
    v_mov_b32 v1, 0
    v_cndmask_b32 v15, v1, v15, vcc
    v_bfe_u32 v10, v5, 1, 2""")
    for j in range(4):
        k(f"v_cmp_eq_u32 vcc, {j}, v10\ns_nop 1\nv_cndmask_b32 v{SEL+j}, v1, v15, vcc")
    k(f"""v_lshlrev_b32 v10, 9, v9
    v_lshl_add_u32 v10, v13, 4, v10
    s_lshl_b32 s20, s26, 8
    s_add_u32 s20, s20, {L_EX}
    v_add_u32 v10, s20, v10
    s_lshl_b32 s20, s25, 13
    s_lshl_b32 s22, s26, 11
    s_add_u32 s20, s20, s22
    s_add_u32 s20, s20, {L_EX}
    v_add_u32 v9, s20, v4
    s_cmp_eq_u32 s2, 0
    s_cselect_b32 s27, 0, 1.0""")
    def rd(dst, areg, off, tag):
        k(f"ds_read_b128 {vr(dst,4)}, v{areg} offset:{off}"); lg.push(tag)
    vm.wait([("A", 2)]); k("s_barrier")
    if stamps: k.mark(0)
    for t in range(4):
        rd(U + 8 * t, 2, 8192 * t, ("U", t, 0)); rd(CB + 12 * t, 6, 1024 * t, ("C", t, 0)); rd(CB + 12 * t + 8, 6, 8192 + 1024 * t, ("C", t, 2))
        if t == 0: pass
        rd(U + 8 * t + 4, 3, 8192 * t, ("U", t, 1)); rd(CB + 12 * t + 4, 6, 4096 + 1024 * t, ("C", t, 1))
        if t == 1: break
    for t in range(4):
        ure, uim = vr(U + 8 * t, 4), vr(U + 8 * t + 4, 4)
        C, S, N = vr(CB + 12 * t, 4), vr(CB + 12 * t + 4, 4), vr(CB + 12 * t + 8, 4)
        re, im = vr(ACC, 16), vr(ACC + 16, 16)
        lg.wait([("U", t, 0), ("C", t, 0)])
        k(f"{MF} {re}, {ure}, {C}, {re if t else 0}")
        t2 = t + 2
        if t2 < 4: rd(U + 8 * t2, 2, 8192 * t2, ("U", t2, 0)); rd(CB + 12 * t2, 6, 1024 * t2, ("C", t2, 0))
        lg.wait([("C", t, 2)])
        k(f"{MF} {im}, {ure}, {N}, {im if t else 0}")
        if t2 < 4: rd(CB + 12 * t2 + 8, 6, 8192 + 1024 * t2, ("C", t2, 2)); rd(U + 8 * t2 + 4, 3, 8192 * t2, ("U", t2, 1))
        lg.wait([("U", t, 1), ("C", t, 1)])
        k(f"{MF} {re}, {uim}, {S}, {re}")
        if t2 < 4: rd(CB + 12 * t2 + 4, 6, 4096 + 1024 * t2, ("C", t2, 1))
        if t == 2:
            vm.wait([("B", 2)]); k("s_barrier")
            for i in range(8): rd(TW + 4 * i, 7, 1024 * i, ("T1", i))
        if t == 3:
            for i in range(6): rd(F32 + 4 * i, 8, 1024 * i, ("F", i))
        k(f"{MF} {im}, {uim}, {C}, {im}")
    for e in range(8):
        if e: k(f"v_xor_b32 v15, {16*e}, v14")
        k(f"ds_read_b128 {vr(RF+4*e,4)}, v{15 if e else 14}"); lg.push(("R", e))
        if e == 0: lg.wait([("T1", 7)])
    def cm(tw): cmul_batch(k, [(ACC + 2 * i, ACC + 16 + 2 * i, tw + 2 * i, tw + 16 + 2 * i) for i in range(8)], U)
    def cv():
        for ri in range(2):
            for i in range(8): k(f"v_cvt_pk_bf16_f32 v{Z+8*ri+i}, v{ACC+16*ri+2*i}, v{ACC+16*ri+2*i+1}")
    cm(TW); cv()
    if stamps: k.mark(1)
    lg.wait([("R", 7)])
    for e in range(8): k(f"{MF16} {vr(A4+4*e,4)}, {vr(RF+4*e,4)}, {vr(SEL,4)}, 0")
    re, im = vr(ACC, 16), vr(ACC + 16, 16)
    zr = lambda c: vr(Z + 4 * c, 4); zi = lambda c: vr(Z + 8 + 4 * c, 4)
    Cc = lambda c: vr(F32 + 4 * c, 4); Sc = lambda c: vr(F32 + 8 + 4 * c, 4); Nc = lambda c: vr(F32 + 16 + 4 * c, 4)
    mf = [f"{MF} {re}, {Cc(0)}, {zr(0)}, 0", f"{MF} {im}, {Nc(0)}, {zr(0)}, 0", f"{MF} {re}, {Cc(1)}, {zr(1)}, {re}", f"{MF} {im}, {Nc(1)}, {zr(1)}, {im}",
          f"{MF} {re}, {Sc(0)}, {zi(0)}, {re}", f"{MF} {im}, {Cc(0)}, {zi(0)}, {im}", f"{MF} {re}, {Sc(1)}, {zi(1)}, {re}", f"{MF} {im}, {Cc(1)}, {zi(1)}, {im}"]
    vm.wait([("W", 3)])
    unp = []
    for i in range(16): unp += [f"v_lshlrev_b32 v{WU+2*i}, 16, v{WR+i}", f"v_and_b32 v{WU+2*i+1}, 0xffff0000, v{WR+i}"]
    interleave(k, mf, unp, 4)
    k("s_nop 7")
    cm(WU); cv()
    mf = [f"{MF} {re}, {zr(0)}, {Cc(0)}, 0", f"{MF} {im}, {zr(0)}, {Sc(0)}, 0", f"{MF} {re}, {zr(1)}, {Cc(1)}, {re}", f"{MF} {im}, {zr(1)}, {Sc(1)}, {im}",
          f"{MF} {re}, {zi(0)}, {Nc(0)}, {re}", f"{MF} {im}, {zi(0)}, {Cc(0)}, {im}", f"{MF} {re}, {zi(1)}, {Nc(1)}, {re}", f"{MF} {im}, {zi(1)}, {Cc(1)}, {im}"]
    vm.wait(["SD"]); k("s_barrier")
    for i in range(8): rd(TW + 4 * i, 7, T_T2 - T_T1 + 1024 * i, ("T2", i))
    B4 = WU
    for i in range(6): rd(B4 + 4 * i, 11, 1024 * i, ("B4", i))
    sc = [f"v_mul_f32 v{A4+4*e+i}, v{A4+4*e+i}, v{SD+i}" for e in range(8) for i in range(4)]
    interleave(k, mf, sc, 4)
    k("s_nop 7")
    lg.wait([("T2", 7)])
    cm(TW); cv()
    for ri in range(2):
        for c in range(2): k(f"ds_write_b128 v9, {vr(Z+8*ri+4*c,4)} offset:{4096*ri+1024*c}")
    k("s_waitcnt lgkmcnt(0)\ns_barrier"); lg.done = len(lg.q) - 1
    if stamps: k.mark(2)
    X = 96
    order = [(cc, ri, p) for cc in range(4) for ri in range(2) for p in range(2)]
    for i, (cc, ri, p) in enumerate(order[:12]): rd(X + 4 * i, 10, 8192 * cc + 4096 * ri + 2048 * p, ("X", i))
    for i, (cc, ri, p) in enumerate(order):
        lg.wait([("X", i)])
        x = vr(X + 4 * i, 4); zre, zim = vr(A4 + 8 * cc, 4), vr(A4 + 8 * cc + 4, 4)
        C4, S4, N4 = vr(B4 + 4 * p, 4), vr(B4 + 8 + 4 * p, 4), vr(B4 + 16 + 4 * p, 4)
        if ri == 0: k(f"{MF16} {zre}, {x}, {C4}, {zre}\n{MF16} {zim}, {x}, {S4}, {zim}")
        else: k(f"{MF16} {zre}, {x}, {N4}, {zre}\n{MF16} {zim}, {x}, {C4}, {zim}")
        if i + 12 < 16:
            cc2, ri2, p2 = order[i + 12]; rd(X + 4 * (i + 12), 10, 8192 * cc2 + 4096 * ri2 + 2048 * p2, ("X", i + 12))
    for i in range(4): k(f"v_mul_f32 v{A4+i}, s27, v{A4+i}")
    for cc in range(4):
        for i in range(4): k(f"v_cvt_pk_bf16_f32 v{Z+4*i+cc}, v{A4+8*cc+i}, v{A4+8*cc+4+i}")
    for i in range(4): k(f"buffer_store_dwordx4 {vr(Z+4*i,4)}, v12, s[12:15], s21 offen offset:{128*i} {st_flags}")
    if stamps: k.mark(3); k.stamp_end()
    k.label(f"END_{name}")
    k("s_endpgm")
    return k, 256, 0, 96

if __name__ == "__main__":
    from gen_k1 import gen_k1
    from gen_tab import tables
    k1 = gen_k1(stamps=True, tables=tables); k2 = gen_k2(stamps=True)
    open("t_k12.s", "w").write(make_file("; test", [("k1_kernel", k1[4], 256, 65536), ("k2_kernel", 128, 512, K2_LDS)], [k1[:4], k2]))
```

```python
from asmgen import *
from layout import *
from gen_k1 import fl, SC, interleave, MF
from gen_gemm import Q
import math

def gen_kr(name="kr_kernel", stamps=False, st_flags=""):
    k = K(name)
    k(f"s_cmp_ge_u32 s2, 256\ns_cbranch_scc1 END_{name}")
    if stamps: k.stamp_begin()
    k("s_load_dwordx2 s[4:5], s[0:1], 64")
    k("v_lshrrev_b32 v1, 6, v0\nv_and_b32 v5, 63, v0\nv_readfirstlane_b32 s24, v1")
    k("""v_and_b32 v1, 3, v5
    v_bfe_u32 v2, v5, 3, 1
    v_lshl_add_u32 v1, v2, 2, v1
    v_lshlrev_b32 v1, 4, v1
    v_bfe_u32 v2, v5, 2, 1
    v_lshl_add_u32 v1, v2, 11, v1
    v_bfe_u32 v2, v5, 4, 1
    v_lshl_add_u32 v1, v2, 12, v1
    v_lshrrev_b32 v2, 5, v5
    v_lshl_add_u32 v1, v2, 9, v1
    v_add_u32 v3, 8192, v1""")
    k("""s_lshr_b32 s16, s2, 2
    s_lshl_b32 s16, s16, 16
    s_lshl_b32 s17, s24, 14
    s_add_u32 s16, s16, s17
    s_and_b32 s17, s2, 3
    s_lshl_b32 s17, s17, 7
    s_add_u32 s16, s16, s17""")
    k("s_waitcnt lgkmcnt(0)")
    k.srd(12, 4, 5, WS_BYTES)
    vm = Q(k, "vmcnt", 63)
    IN, ACC, SEL, G = 16, 96, 128, 136
    bases = [WS_RP] + [WS_P + q * 4 * MB for q in range(4)]
    for a, b in enumerate(bases):
        k(f"s_add_u32 s17, s16, {b}")
        for dt in range(2):
            for x in range(2):
                k(f"buffer_load_dwordx4 {vr(IN+16*a+8*dt+4*x,4)}, v{1+2*dt}, s[12:15], s17 offen offset:{1024*x}"); vm.push((a, dt, x))
    k(f"s_lshl_b32 s18, s2, 5\ns_add_u32 s18, s18, {WS_MEAN}\nv_cmp_eq_u32 vcc, 0, v0\nv_bfrev_b32 v4, -2\nv_mov_b32 v6, 0\nv_mov_b32 v7, 1.0")
    k("v_cndmask_b32 v4, v4, v6, vcc\nv_cndmask_b32 v7, v7, v6, vcc")
    k(f"buffer_load_dwordx4 {vr(G,4)}, v4, s[12:15], s18 offen\nbuffer_load_dwordx4 {vr(G+4,4)}, v4, s[12:15], s18 offen offset:16")
    vm.push("m0"); vm.push("m1")
    k("""v_and_b32 v8, 1, v5
    v_lshlrev_b32 v8, 4, v8
    v_mov_b32 v9, 0x3f80
    v_lshlrev_b32 v8, v8, v9
    v_bfe_u32 v9, v5, 1, 4
    v_lshlrev_b32 v10, 2, v2
    v_sub_u32 v9, v9, v10""")
    for x in range(2):
        for jj in range(4):
            k(f"v_cmp_eq_u32 vcc, {8*x+jj}, v9\ns_nop 1\nv_cndmask_b32 v{SEL+4*x+jj}, v6, v8, vcc")
    k("s_nop 1")
    for a in range(5):
        for x in range(2):
            for dt in range(2):
                vm.wait([(a, dt, x)])
                d = vr(ACC + 16 * dt, 16)
                k(f"{MF} {d}, {vr(IN+16*a+8*dt+4*x,4)}, {vr(SEL+4*x,4)}, {d if (a or x) else 0}")
    k(f"""v_lshlrev_b32 v1, 4, v5
    s_lshl_b32 s16, s2, 14
    s_lshl_b32 s17, s24, 12
    s_add_u32 s16, s16, s17
    s_add_u32 s16, s16, {WS_RN}
    s_lshl_b32 s19, s24, 5
    v_bfe_u32 v2, v5, 4, 1
    v_lshlrev_b32 v2, 3, v2
    v_bfe_u32 v3, v5, 5, 1
    v_lshl_add_u32 v2, v3, 2, v2
    v_add_u32 v2, s19, v2
    s_mov_b32 s20, {fl(SC)}
    s_nop 3""")
    vm.wait(["m1"])
    for j in range(8): k(f"v_fma_f32 v{G+j}, v{ACC+j}, s20, v{G+j}")
    k(f"buffer_store_dwordx4 {vr(G,4)}, v4, s[12:15], s18 offen\nbuffer_store_dwordx4 {vr(G+4,4)}, v4, s[12:15], s18 offen offset:16")
    for j in range(8): k(f"v_mul_f32 v{ACC+j}, v{ACC+j}, v7")
    for j in range(0, 8, 2): k(f"v_pk_mul_f32 {vr(8+j,2)}, {vr(ACC+8+j,2)}, {vr(ACC+8+j,2)}")
    for o in (16, 24, 0):
        for j in range(0, 8, 2): k(f"v_pk_fma_f32 {vr(8+j,2)}, {vr(ACC+o+j,2)}, {vr(ACC+o+j,2)}, {vr(8+j,2)}")
    k("s_nop 1")
    for i in range(4): k(f"v_permlane32_swap_b32 v{8+2*i}, v{9+2*i}")
    for i in range(4): k(f"v_add_f32 v{8+2*i}, v{8+2*i}, v{9+2*i}")
    k("s_nop 1")
    for i in range(2): k(f"v_permlane16_swap_b32 v{8+4*i}, v{10+4*i}")
    for i in range(2): k(f"v_add_f32 v{8+4*i}, v{8+4*i}, v{10+4*i}")
    for sh in (8, 4, 2, 1):
        k("s_nop 1")
        for i in range(2): k(f"v_add_f32_dpp v{8+4*i}, v{8+4*i}, v{8+4*i} row_ror:{sh} row_mask:0xf bank_mask:0xf")
    k("ds_write_b32 v2, v8\nds_write_b32 v2, v12 offset:16\ns_waitcnt lgkmcnt(0)\ns_barrier")
    for i in range(8): k(f"ds_read_b128 {vr(IN+4*i,4)}, v6 offset:{16*i}")
    k(f"v_mov_b32 v2, {fl(1e-5)}\ns_waitcnt lgkmcnt(0)")
    for j in range(0, 8, 2): k(f"v_pk_add_f32 {vr(IN+j,2)}, {vr(IN+j,2)}, {vr(IN+8+j,2)}\nv_pk_add_f32 {vr(IN+16+j,2)}, {vr(IN+16+j,2)}, {vr(IN+24+j,2)}")
    for j in range(0, 8, 2): k(f"v_pk_add_f32 {vr(IN+j,2)}, {vr(IN+j,2)}, {vr(IN+16+j,2)}")
    for j in range(8): k(f"v_fmamk_f32 v{IN+j}, v{IN+j}, {fl(1/1024)}, v2")
    for j in range(8): k(f"v_rsq_f32 v{8+j}, v{IN+j}")
    k("s_nop 0")
    for o in range(4):
        for j in range(0, 8, 2): k(f"v_pk_mul_f32 {vr(ACC+8*o+j,2)}, {vr(ACC+8*o+j,2)}, {vr(8+j,2)}")
        for j in range(4): k(f"v_cvt_pk_bf16_f32 v{IN+16+4*o+j}, v{ACC+8*o+2*j}, v{ACC+8*o+2*j+1}")
        k(f"buffer_store_dwordx4 {vr(IN+16+4*o,4)}, v1, s[12:15], s16 offen offset:{1024*o} {st_flags}")
    k(f"""s_cmp_lg_u32 s24, 0
    s_cbranch_scc1 KR_DONE
    s_lshr_b32 s18, s2, 2
    s_lshl_b32 s18, s18, 7
    s_and_b32 s19, s2, 3
    s_lshl2_add_u32 s18, s19, s18
    s_add_u32 s18, s18, {WS_STD}""")
    for j in range(8): k(f"v_sqrt_f32 v{IN+j}, v{IN+j}")
    k("s_nop 0")
    for j in range(8): k(f"buffer_store_dword v{IN+j}, v4, s[12:15], s18 offen offset:{16*j}")
    k.label("KR_DONE")
    if stamps: k.stamp_end()
    k.label(f"END_{name}")
    k("s_endpgm")
    return k, 144, 0, 96

def gen_kf(name="kf_kernel", stamps=False):
    k = K(name)
    k(f"s_cmp_ge_u32 s2, 256\ns_cbranch_scc1 END_{name}")
    if stamps: k.stamp_begin()
    k("s_load_dwordx2 s[4:5], s[0:1], 64\ns_load_dwordx2 s[6:7], s[0:1], 48")
    k("v_lshrrev_b32 v1, 6, v0\nv_and_b32 v5, 63, v0\nv_readfirstlane_b32 s24, v1\nv_lshlrev_b32 v4, 4, v5")
    k("""v_and_b32 v1, 3, v5
    v_bfe_u32 v2, v5, 3, 1
    v_lshl_add_u32 v1, v2, 2, v1
    v_lshlrev_b32 v1, 4, v1
    v_bfe_u32 v2, v5, 2, 1
    v_lshl_add_u32 v1, v2, 10, v1
    v_bfe_u32 v2, v5, 4, 1
    v_lshl_add_u32 v1, v2, 9, v1
    v_lshrrev_b32 v2, 5, v5
    v_lshl_add_u32 v1, v2, 15, v1
    v_add_u32 v3, 16384, v1""")
    k("""s_lshr_b32 s16, s2, 2
    s_lshl_b32 s16, s16, 16
    s_lshl_b32 s17, s24, 12
    s_add_u32 s16, s16, s17
    s_and_b32 s17, s2, 3
    s_lshl_b32 s17, s17, 7
    s_add_u32 s16, s16, s17""")
    k("s_waitcnt lgkmcnt(0)")
    k.srd(12, 4, 5, WS_BYTES); k.srd(8, 6, 7, 4194304)
    vm = Q(k, "vmcnt", 63)
    IN, ACC, MA, MB_, NY, TW, EN, Z = 16, 96, 160, 176, 192, 208, 216, 220
    k(f"s_mov_b32 s17, {WS_TAB + T_MA}")
    for i in range(4): k(f"buffer_load_dwordx4 {vr(MA+4*i,4)}, v4, s[12:15], s17 offen offset:{1024*i}"); vm.push(("MA", i))
    bases = [WS_RP] + [WS_P + q * 4 * MB for q in range(4)]
    for a, b in enumerate(bases):
        k(f"s_add_u32 s17, s16, {b}")
        for tl in range(2):
            for c in range(2):
                k(f"buffer_load_dwordx4 {vr(IN+16*a+8*tl+4*c,4)}, v{1+2*c}, s[12:15], s17 offen offset:{2048*tl}"); vm.push((a, tl, c))
    k(f"s_mov_b32 s17, {WS_TAB + T_MB}")
    for i in range(4): k(f"buffer_load_dwordx4 {vr(MB_+4*i,4)}, v4, s[12:15], s17 offen offset:{1024*i}"); vm.push(("MB", i))
    k(f"s_lshl_b32 s18, s2, 5\ns_lshl3_add_u32 s18, s24, s18\ns_add_u32 s18, s18, {WS_MEAN}\ns_buffer_load_dwordx2 s[28:29], s[12:15], s18")
    k(f"""v_and_b32 v8, 4, v5
    v_lshlrev_b32 v8, 2, v8
    v_bfe_u32 v9, v5, 3, 2
    v_lshl_add_u32 v8, v9, 2, v8
    v_and_b32 v9, 3, v5
    v_add_u32 v8, v8, v9
    s_lshl_b32 s19, s24, 3
    v_lshl_add_u32 v9, v2, 1, s19
    v_cvt_f32_u32 v8, v8
    v_cvt_f32_u32 v9, v9
    v_mul_f32 v8, {fl(1/1024)}, v8
    v_mul_f32 v9, v8, v9""")
    for i in range(4): k(f"v_fmamk_f32 v{TW+2*i+1}, v8, {fl(4*(i>>1)+(i&1))}, v9")
    for i in range(4): k(f"v_cos_f32 v{TW+2*i}, v{TW+2*i+1}")
    for i in range(4): k(f"v_sin_f32 v{TW+2*i+1}, v{TW+2*i+1}")
    k("s_nop 0")
    for i in range(8): k(f"v_mul_f32 v{TW+i}, {fl(SC)}, v{TW+i}")
    k(f"""v_lshlrev_b32 v8, 31, v5
    v_xor_b32 v8, 1.0, v8
    v_mov_b32 v9, 0
    v_cmp_gt_u32 vcc, 32, v5
    v_mov_b32 v{EN+1}, 0
    v_mov_b32 v{EN+2}, 0
    v_cndmask_b32 v{EN}, v9, v8, vcc
    v_mov_b32 v{EN+3}, 0
    v_cmp_gt_u32 vcc, 32, v0
    v_mov_b32 v8, {fl(math.sqrt(0.5))}
    s_nop 0
    v_cndmask_b32 v6, v9, v8, vcc""")
    k("""s_lshr_b32 s19, s24, 1
    s_lshl_b32 s19, s19, 10
    s_and_b32 s20, s24, 1
    s_lshl3_add_u32 s19, s20, s19
    v_add_u32 v7, s19, v4
    s_lshl_b32 s19, s24, 13
    v_add_u32 v10, s19, v4""")
    k("""v_and_b32 v11, 31, v5
    v_lshlrev_b32 v11, 6, v11
    v_lshl_add_u32 v11, v2, 5, v11
    s_lshr_b32 s19, s2, 5
    s_lshl_b32 s19, s19, 8
    s_and_b32 s20, s2, 31
    s_add_u32 s19, s19, s20
    s_lshl_b32 s19, s19, 11
    s_lshl_b32 s20, s24, 17
    s_add_u32 s19, s19, s20
    s_add_u32 s20, s19, 0x10000""")
    vm.wait([("MA", 3)])
    for a in range(5):
        for tl in range(2):
            for c in range(2):
                vm.wait([(a, tl, c)])
                x = vr(IN + 16 * a + 8 * tl + 4 * c, 4)
                for ri in range(2):
                    d = vr(ACC + 32 * tl + 16 * ri, 16)
                    k(f"{MF} {d}, {x}, {vr(MA+8*ri+4*c,4)}, {d if (a or c) else 0}")
                if tl == 0 and c == 0: k(f"{MF} {vr(NY,16)}, {x}, {vr(EN,4)}, {vr(NY,16) if a else 0}")
    k("s_nop 7")
    for j in range(8): k(f"v_fmac_f32 v{ACC+j}, v{NY+j}, v6")
    for tl in range(2):
        for be in range(2):
            t = vr(TW + 4 * tl + 2 * be, 2)
            lo, hi = "op_sel:[0,0] op_sel_hi:[1,0]", "op_sel:[0,1] op_sel_hi:[1,1]"
            lo3, hi3 = "op_sel:[0,0,0] op_sel_hi:[1,0,1]", "op_sel:[0,1,0] op_sel_hi:[1,1,1]"
            R = [(ACC + 32 * tl + 8 * be + 2 * i, ACC + 32 * tl + 16 + 8 * be + 2 * i, IN + 2 * i) for i in range(4)]
            for re, im, tm in R: k(f"v_pk_mul_f32 {vr(tm,2)}, {vr(im,2)}, {t} {hi}")
            for re, im, tm in R: k(f"v_pk_mul_f32 {vr(im,2)}, {vr(im,2)}, {t} {lo}")
            for re, im, tm in R: k(f"v_pk_fma_f32 {vr(im,2)}, {vr(re,2)}, {t}, {vr(im,2)} {hi3}")
            for re, im, tm in R: k(f"v_pk_fma_f32 {vr(re,2)}, {vr(re,2)}, {t}, {vr(tm,2)} {lo3} neg_lo:[0,0,1] neg_hi:[0,0,1]")
    for sg in range(8):
        for ri in range(2):
            z = Z + 2 * ((2 * sg + ri) % 16)
            for tl in range(2): k(f"v_cvt_pk_bf16_f32 v{z+tl}, v{ACC+32*tl+16*ri+sg}, v{ACC+32*tl+16*ri+8+sg}")
            k(f"ds_write_b64 v7, {vr(z,2)} offset:{4096*sg+2048*ri}")
    k("s_waitcnt lgkmcnt(0)")
    for r in range(2):
        for i in range(16): k(f"v_mov_b32 v{ACC+16*r+i}, s{28+r}")
    k("s_barrier")
    for i in range(8): k(f"ds_read_b128 {vr(IN+4*i,4)}, v10 offset:{1024*i}")
    vm.wait([("MB", 3)])
    for i in range(8):
        r, ri, c2 = i >> 2, (i >> 1) & 1, i & 1
        k(f"s_waitcnt lgkmcnt({7-i})")
        d = vr(ACC + 16 * r, 16)
        k(f"{MF} {d}, {vr(IN+4*i,4)}, {vr(MB_+8*ri+4*c2,4)}, {d}")
    k("s_nop 7")
    for r in range(2):
        if r: k("s_nop 1")
        for c in range(2):
            for j in range(4): k(f"v_cvt_pk_bf16_f32 v{Z+8*r+4*c+j}, v{ACC+16*r+8*c+2*j}, v{ACC+16*r+8*c+2*j+1}")
            k(f"buffer_store_dwordx4 {vr(Z+8*r+4*c,4)}, v11, s[8:11], s{19+r} offen offset:{16*c}")
    if stamps: k.stamp_end()
    k.label(f"END_{name}")
    k("s_endpgm")
    return k, 252, 0, 96
```

```python
from asmgen import *
from layout import *
from gen_k1 import fl, SC
PB = [8 * (j >> 2) + (j & 3) for j in range(8)]
def tables(k):
    k("v_lshlrev_b32 v1, 4, v5\nv_and_b32 v2, 31, v5\nv_lshrrev_b32 v3, 5, v5")
    def body(ys, kind, offs, sc=1.0, ss=1.0):
        for j in range(8): k(f"v_fmamk_f32 v{24+j}, v8, {fl(ys[j])}, v9")
        for j in range(8): k(f"v_cos_f32 v{16+j}, v{24+j}")
        for j in range(8): k(f"v_sin_f32 v{24+j}, v{24+j}")
        k(f"s_add_u32 s16, s16, {WS_TAB}")
        if kind == "bf":
            for j in range(4): k(f"v_cvt_pk_bf16_f32 v{32+j}, v{16+2*j}, v{17+2*j}")
            for j in range(4): k(f"v_cvt_pk_bf16_f32 v{36+j}, v{24+2*j}, v{25+2*j}")
            for j in range(4): k(f"v_cvt_pk_bf16_f32 v{40+j}, -v{24+2*j}, -v{25+2*j}")
            for i, o in enumerate(offs):
                if o is None: continue
                k(f"s_add_u32 s17, s16, {o}\nbuffer_store_dwordx4 {vr(32+4*i,4)}, v1, s[12:15], s17 offen")
        else:
            for j in range(8): k(f"v_mul_f32 v{16+j}, {fl(sc)}, v{16+j}")
            for j in range(8): k(f"v_mul_f32 v{24+j}, {fl(ss)}, v{24+j}")
            k("s_add_u32 s17, s16, 4096")
            for q in range(2):
                k(f"buffer_store_dwordx4 {vr(16+4*q,4)}, v1, s[12:15], s16 offen offset:{1024*q}")
                k(f"buffer_store_dwordx4 {vr(24+4*q,4)}, v1, s[12:15], s17 offen offset:{1024*q}")
        k("s_branch K1_DONE")
    def fin(gam, ymul=1.0):
        k(f"v_cvt_f32_u32 v8, v8\nv_cvt_f32_u32 v9, v9\nv_mul_f32 v8, {fl(gam)}, v8\nv_mul_f32 v9, {fl(ymul)}, v9\nv_mul_f32 v9, v8, v9")
    k("s_cmp_ge_u32 s3, 8\ns_cbranch_scc1 TB_1")
    k("s_lshr_b32 s18, s3, 2\ns_and_b32 s19, s3, 3\ns_lshl_b32 s20, s19, 4")
    k("v_lshl_add_u32 v8, v2, 1, s18\nv_lshl_add_u32 v9, v3, 3, s20")
    fin(1 / 64)
    k(f"s_mul_i32 s16, s18, 12\ns_add_u32 s16, s16, s19\ns_lshl_b32 s16, s16, 10")
    body(list(range(8)), "bf", [T_B1, T_B1 + 4096, T_B1 + 8192])
    k.label("TB_1")
    k("s_cmp_ge_u32 s3, 16\ns_cbranch_scc1 TB_2")
    k("s_bfe_u32 s18, s3, 0x20001\ns_and_b32 s19, s3, 1\ns_lshl_b32 s20, s18, 4")
    k("v_and_b32 v8, 15, v5\nv_add_u32 v8, s20, v8\nv_bfe_u32 v9, v5, 4, 1\nv_lshl_add_u32 v9, v9, 3, s19\nv_lshl_add_u32 v9, v3, 5, v9")
    fin(1 / 32, 0.5)
    k(f"s_mul_i32 s16, s18, 6\ns_add_u32 s16, s16, s19\ns_lshl_b32 s16, s16, 10")
    body(PB, "bf", [T_B4, T_B4 + 2048, T_B4 + 4096])
    k.label("TB_2")
    k("s_cmp_ge_u32 s3, 18\ns_cbranch_scc1 TB_3")
    k("s_and_b32 s19, s3, 1\ns_lshl_b32 s20, s19, 4")
    k("v_mov_b32 v8, v2\nv_lshl_add_u32 v9, v3, 2, s20")
    fin(1 / 32)
    k("s_lshl_b32 s16, s19, 10")
    body(PB, "bf", [T_B2, T_B2 + 2048, T_B2 + 4096])
    k.label("TB_3")
    k("s_cmp_ge_u32 s3, 20\ns_cbranch_scc1 TB_4")
    k("s_and_b32 s19, s3, 1\ns_lshl_b32 s20, s19, 2")
    k("v_and_b32 v8, 4, v5\nv_lshlrev_b32 v8, 2, v8\nv_bfe_u32 v9, v5, 3, 2\nv_lshl_add_u32 v8, v9, 2, v8\nv_and_b32 v9, 3, v5\nv_add_u32 v8, v8, v9")
    k("v_lshl_add_u32 v9, v3, 3, s20")
    fin(1 / 32)
    k("s_lshl_b32 s16, s19, 10")
    for j in range(8): k(f"v_fmamk_f32 v{24+j}, v8, {fl(j>>1)}, v9")
    for j in range(1, 8, 2): k(f"v_add_f32 v{24+j}, {fl(0.25)}, v{24+j}")
    for j in range(8): k(f"v_cos_f32 v{16+j}, v{24+j}")
    for j in range(8): k(f"v_sin_f32 v{24+j}, v{24+j}")
    k(f"s_add_u32 s16, s16, {WS_TAB + T_MA}")
    for j in range(4): k(f"v_cvt_pk_bf16_f32 v{32+j}, v{16+2*j}, v{17+2*j}")
    for j in range(4): k(f"v_cvt_pk_bf16_f32 v{36+j}, v{24+2*j}, v{25+2*j}")
    k("buffer_store_dwordx4 v[32:35], v1, s[12:15], s16 offen\nbuffer_store_dwordx4 v[36:39], v1, s[12:15], s16 offen offset:2048")
    k("s_branch K1_DONE")
    k.label("TB_4")
    k("s_cmp_ge_u32 s3, 24\ns_cbranch_scc1 TB_5")
    k("s_bfe_u32 s18, s3, 0x10001\ns_and_b32 s19, s3, 1\ns_lshl_b32 s20, s19, 4")
    k("v_lshl_add_u32 v8, v2, 1, s18\nv_lshl_add_u32 v9, v3, 2, s20")
    fin(1 / 2048)
    k(f"s_lshl_b32 s16, s18, 13\ns_lshl_b32 s17, s19, 11\ns_add_u32 s16, s16, s17\ns_add_u32 s16, s16, {T_T1}")
    body(PB, "f32", None, 1.0, -1.0)
    k.label("TB_5")
    k("s_cmp_ge_u32 s3, 28\ns_cbranch_scc1 TB_6")
    k("s_bfe_u32 s18, s3, 0x10001\ns_and_b32 s19, s3, 1\ns_lshl_b32 s20, s19, 5\ns_add_u32 s20, s20, s18")
    k("v_mov_b32 v8, v2\nv_lshl_add_u32 v9, v3, 3, s20")
    fin(1 / 1024, 0.5)
    k(f"s_lshl_b32 s16, s18, 13\ns_lshl_b32 s17, s19, 11\ns_add_u32 s16, s16, s17\ns_add_u32 s16, s16, {T_T2}")
    body(PB, "f32", None, 1 / 2048, 1 / 2048)
    k.label("TB_6")
    k("s_cmp_ge_u32 s3, 30\ns_cbranch_scc1 K1_DONE")
    k("s_and_b32 s19, s3, 1\ns_lshl_b32 s20, s19, 4")
    k("v_mov_b32 v8, v2\nv_lshl_add_u32 v9, v3, 1, s20")
    fin(1 / 32)
    k("s_lshl_b32 s16, s19, 10")
    body([4 * (j >> 1) + (j & 1) for j in range(8)], "bf", [T_MB, None, T_MB + 2048])
```

```python
import numpy as np
MB = 1 << 20
WS_RN  = 0 * MB
WS_RP  = 4 * MB
WS_H   = 8 * MB
WS_P   = 24 * MB
WS_W1Q = 40 * MB
WS_W2Q = 48 * MB
WS_WT  = 56 * MB
WS_STD = 60 * MB
WS_MEAN= 60 * MB + 8192
WS_TAB = 61 * MB
WS_BYTES = 268435456

def to_bf16_bits(x):
    x = np.ascontiguousarray(x, dtype=np.float32); u = x.view(np.uint32)
    return ((u + 0x7FFF + ((u >> 16) & 1)) >> 16).astype(np.uint16)
def from_bf16_bits(u): return (u.astype(np.uint32) << 16).view(np.float32)
def tile_pack(M):
    R, K = M.shape
    return np.ascontiguousarray(M.reshape(R // 32, 32, K // 16, 2, 8).transpose(0, 2, 3, 1, 4))
def tile_unpack(T, R, K):
    return np.ascontiguousarray(T.reshape(R // 32, K // 16, 2, 32, 8).transpose(0, 3, 1, 2, 4).reshape(R, K))
def w2q_pack(Wm):
    return np.ascontiguousarray(Wm.reshape(224, 2, 8, 8, 4, 32).transpose(3, 0, 4, 1, 5, 2))
def w2q_unpack(T):
    return np.ascontiguousarray(T.reshape(8, 224, 4, 2, 32, 8).transpose(1, 3, 5, 0, 2, 4).reshape(3584, 1024))

def w2q_pack2(Wm):
    return np.ascontiguousarray(Wm.reshape(224, 2, 8, 32, 32).transpose(3, 0, 1, 4, 2))
def w2q_unpack2(T):
    return np.ascontiguousarray(T.reshape(32, 224, 2, 32, 8).transpose(1, 2, 4, 0, 3).reshape(3584, 1024))

def gemm_blocks(NT, NG, P1):
    return [(t, g) for g in range(NG) for t in range(P1)] + [(t, g) for t in range(P1, NT) for g in range(NG)]
def w1q_stream(Wm, P1):
    out = np.empty((16, 112, 32, 8, 8), Wm.dtype)
    rho = np.arange(32); T = rho >> 4; m = rho & 15; Fl = 8 * (m >> 2) + 4 * T + (m & 3)
    slot = np.arange(8); chunk = slot[None, :] ^ ((rho[:, None] >> 1) & 7)
    W4 = Wm.reshape(16, 7, 32, 16, 8, 8)
    for b, (t, g) in enumerate(gemm_blocks(7, 16, P1)):
        out[:, b] = W4[:, t][:, Fl[:, None], g, chunk]
    return out
def w2q_stream(Wm, P1):
    out = np.empty((4, 4, 112, 8, 32, 8), Wm.dtype)
    pos = np.arange(32); T = pos >> 4; m = pos & 15; fl = 8 * (m >> 2) + 4 * T + (m & 3)
    W6 = Wm.reshape(4, 14, 8, 8, 4, 8, 32)
    for b, (t, g) in enumerate(gemm_blocks(8, 14, P1)):
        out[:, :, b] = W6[:, g][:, :, :, :, t][..., fl].transpose(0, 3, 1, 4, 2)
    return out

def f_of_kri():
    f = np.arange(1024); fblk = f >> 3; cc = (f >> 1) & 3; ri = f & 1
    k = (fblk & 31) + 32 * (4 * (fblk >> 5) + cc)
    return 2 * k + ri
def s_of_sp():
    sp = np.arange(2048); o = sp >> 8; n2 = (sp >> 3) & 31; j = sp & 7
    return 256 * o + 32 * j + n2
def rn_pack(Rsp):
    return np.ascontiguousarray(Rsp.reshape(256, 8, 1024).transpose(0, 2, 1))
def rn_unpack(T): return np.ascontiguousarray(T.reshape(256, 1024, 8).transpose(0, 2, 1).reshape(2048, 1024))
def std_pack(v):
    return np.ascontiguousarray(v.reshape(64, 4, 8).transpose(0, 2, 1))
def std_unpack(T): return np.ascontiguousarray(T.reshape(64, 8, 4).transpose(0, 2, 1).reshape(2048))
def wt_pack(wr, wi):
    out = np.empty((128, 4, 2, 32, 2, 2, 16), wr.dtype)
    fblk = np.arange(128)[:, None]; cc = np.arange(4)[None, :]
    col = (fblk & 31) + 32 * (4 * (fblk >> 5) + cc); col = np.where(col == 0, 512, col)
    p = np.arange(2)[:, None, None, None]; k1 = np.arange(32)[None, :, None, None]; h = np.arange(2)[None, None, :, None]; r = np.arange(16)[None, None, None, :]
    ks = 2 * k1 + p + 64 * (8 * (r >> 2) + 4 * h + (r & 3))
    out[:, :, :, :, :, 0, :] = wr[ks[None, None], col[:, :, None, None, None, None]]
    out[:, :, :, :, :, 1, :] = wi[ks[None, None], col[:, :, None, None, None, None]]
    return out

T_B1 = 0
T_T1 = 24 * 1024
T_B2 = 40 * 1024
T_T2 = 48 * 1024
T_B4 = 64 * 1024
T_MA = 88 * 1024
T_MB = 92 * 1024
```

```python
import sys
from asmgen import *
from layout import *
from gen_k1 import gen_k1
from gen_tab import tables
from gen_k2 import gen_k2, K2_LDS
from gen_gemm import gen_gemm
from gen_kr import gen_kr, gen_kf
HDR = open("interleave_layers__spectral_gfnet__dense_activation_silu__prompt.s.ref").read().split("; Override launch")[0]
def build(stamps, P1g1=4, P1g2=6):
    k1 = gen_k1(stamps=stamps, tables=tables, P1g1=P1g1, P1g2=P1g2); k2 = gen_k2(stamps=stamps)
    g1 = gen_gemm("g1_kernel", "g1", stamps=stamps, P1=P1g1, st_flags="nt")
    g2 = gen_gemm("g2_kernel", "g2", stamps=stamps, P1=P1g2, st_flags="sc1", stgap=16)
    kr = gen_kr(stamps=stamps); kf = gen_kf(stamps=stamps)
    L = [("k1_kernel", k1[4], 256, 65536), ("k2_kernel", 128, 512, K2_LDS), ("g1_kernel", 256, 256, 131072), ("g2_kernel", 256, 256, 131072),
         ("kr_kernel", 256, 256, 128), ("k2_kernel", 128, 512, K2_LDS), ("g1_kernel", 256, 256, 131072), ("g2_kernel", 256, 256, 131072),
         ("kf_kernel", 256, 256, 32768)]
    return make_file(HDR, L, [k1[:4], k2, g1, g2, kr, kf])
if __name__ == "__main__":
    open("t_all.s", "w").write(build(True))
    open("interleave_layers__spectral_gfnet__dense_activation_silu__prompt.s", "w").write(build(False))
```
